```python
import torch

def _softmax(x, axis=-1):
    return torch.softmax(x, dim=axis)
def _gelu(x):
    return torch.nn.functional.gelu(x, approximate="tanh")
def _silu(x):
    return torch.nn.functional.silu(x)
def _sigmoid(x):
    return torch.sigmoid(x)
def _layernorm(x, axis=-1, eps=1e-5):
    m = x.mean(dim=axis, keepdim=True)
    v = x.var(dim=axis, keepdim=True, unbiased=False)
    return (x - m) / torch.sqrt(v + eps)
def _scatter_add(tgt, idx, src, axis=0):
    return tgt.clone().index_add_(axis, idx, src)
def _segment_sum(src, seg, n):
    out = torch.zeros((n,) + src.shape[1:], dtype=src.dtype)
    return out.index_add_(0, seg, src)
def _pad(x, pw):
    flat = tuple(v for pair in reversed(pw) for v in pair)
    return torch.nn.functional.pad(x, flat)

kernel_name = 'concat_heads__grouped_kv_mqa__spectral_fnet__prompt'

def setup_inputs():

    _w = (lambda a: (lambda t: t.to(torch.bfloat16) if t.is_floating_point() else t)(torch.as_tensor(a)))
    def _A_setup():
        B, S, D, H = 1, 2048, 512, 32
        Dh = D // H
        return {
            "x": _w((lambda *s: torch.randn(*s, dtype=torch.bfloat16) * 0.05)(B, S, D)),
            "wq": _w((lambda *s: torch.randn(*s, dtype=torch.bfloat16) * 3.2)(D, H * Dh)),
            "wk": _w((lambda *s: torch.randn(*s, dtype=torch.bfloat16) * 3.2)(D, Dh)),
            "wv": _w((lambda *s: torch.randn(*s, dtype=torch.bfloat16) * 1.6)(D, Dh)),
            "wo": _w((lambda *s: torch.randn(*s, dtype=torch.bfloat16) * 1.6)(H * Dh, D)),
        }
    _A_in = _A_setup()

    def _B_setup():
        B, S, D = 1, 2048, 512
        ns = torch.arange(S)[:, None] * torch.arange(S)[None, :]
        nd = torch.arange(D)[:, None] * torch.arange(D)[None, :]
        Ws_re = torch.cos(-2.0 * torch.pi * ns / S).to(float)
        Ws_im = torch.sin(-2.0 * torch.pi * ns / S).to(float)
        Wd_re = torch.cos(-2.0 * torch.pi * nd / D).to(float)
        Wd_im = torch.sin(-2.0 * torch.pi * nd / D).to(float)
        return {
            "x": _w((lambda *s: torch.randn(*s, dtype=torch.bfloat16) * 0.05)(B, S, D)),
            "dft_seq_re": _w(Ws_re),
            "dft_seq_im": _w(Ws_im),
            "dft_hid_re": _w(Wd_re),
            "dft_hid_im": _w(Wd_im),
        }
    _B_in = _B_setup()

    return {
        "A_x": _A_in["x"],
        "A_wq": _A_in["wq"],
        "A_wk": _A_in["wk"],
        "A_wv": _A_in["wv"],
        "A_wo": _A_in["wo"],
        "B_x": _B_in["x"],
        "B_dft_seq_re": _B_in["dft_seq_re"],
        "B_dft_seq_im": _B_in["dft_seq_im"],
        "B_dft_hid_re": _B_in["dft_hid_re"],
        "B_dft_hid_im": _B_in["dft_hid_im"],
    }

def reference(A_x, A_wq, A_wk, A_wv, A_wo, B_x, B_dft_seq_re, B_dft_seq_im, B_dft_hid_re, B_dft_hid_im):
    def _A_ref(x, wq, wk, wv, wo):
        B, S, D = x.shape
        H = 32
        Dh = D // H
        q = (lambda x, *d: x.permute(*d))((x @ wq).reshape(B, S, H, Dh), 0, 2, 1, 3)
        k = x @ wk
        v = x @ wv
        scores = torch.einsum("bhqd,bkd->bhqk", q, k) * (Dh ** -0.5)
        p = _softmax(scores, axis=-1)
        o = torch.einsum("bhqk,bkd->bhqd", p, v)
        return (lambda x, *d: x.permute(*d))(o, 0, 2, 1, 3).reshape(B, S, H * Dh) @ wo

    def _B_ref(x, dft_seq_re, dft_seq_im, dft_hid_re, dft_hid_im):
        a = torch.einsum("bsd,ed->bse", x, dft_hid_re)
        b = torch.einsum("bsd,ed->bse", x, dft_hid_im)
        y = torch.einsum("ts,bse->bte", dft_seq_re, a) - torch.einsum("ts,bse->bte", dft_seq_im, b)
        return y

    a = _A_ref(A_x, A_wq, A_wk, A_wv, A_wo)
    b = _B_ref(B_x, B_dft_seq_re, B_dft_seq_im, B_dft_hid_re, B_dft_hid_im)
    return torch.concatenate([a, b], axis=-1)
```

```python
from xp import *
np.set_printoptions(linewidth=250)
inp=np.arange(4096,dtype=np.uint16)
body="""
    v_lshlrev_b32 v1, 4, v0
    buffer_load_dwordx4 v[4:7], v1, s[8:11], 0 offen
    buffer_load_dwordx4 v[8:11], v1, s[8:11], 0 offen offset:1024
    s_waitcnt vmcnt(0)
    ds_write_b128 v1, v[4:7]
    ds_write_b128 v1, v[8:11] offset:1024
    s_waitcnt lgkmcnt(0)
    v_bfe_u32 v2, v0, 2, 2
    v_lshrrev_b32 v3, 5, v0
    v_lshl_add_u32 v2, v3, 3, v2
    v_lshlrev_b32 v2, 7, v2
    v_bfe_u32 v3, v0, 4, 1
    v_lshl_add_u32 v2, v3, 5, v2
    v_and_b32 v3, 3, v0
    v_lshl_add_u32 v2, v3, 3, v2
    ds_read_b64_tr_b16 v[12:13], v2
    ds_read_b64_tr_b16 v[14:15], v2 offset:512
    s_waitcnt lgkmcnt(0)
    buffer_store_dwordx4 v[12:15], v1, s[12:15], 0 offen
"""
o=run("tr",body,inp,1024,lds=4096,outdtype=np.uint16)
if o is not None:
    o=o.reshape(64,8)
    print("tr read: lane -> (row,col) list")
    for l in (0,1,2,15,16,17,31,32,33,48,63): print(l,[(int(x)//64,int(x)%64) for x in o[l]])
def smf(A,B,idx,name,shape="16x16x64",nd=4):
    inp=np.concatenate([A.reshape(-1).view(np.uint32),B.reshape(-1).view(np.uint32),idx.astype(np.uint32)])
    body="""
    v_lshlrev_b32 v1, 4, v0
    v_lshlrev_b32 v2, 5, v0
    v_lshlrev_b32 v3, 2, v0
    buffer_load_dwordx4 v[4:7], v1, s[8:11], 0 offen
    buffer_load_dwordx4 v[8:11], v2, s[8:11], 0 offen offset:1024
    buffer_load_dwordx4 v[12:15], v2, s[8:11], 0 offen offset:1040
    buffer_load_dword v16, v3, s[8:11], 0 offen offset:3072
    v_mov_b32 v20, 0
    v_mov_b32 v21, 0
    v_mov_b32 v22, 0
    v_mov_b32 v23, 0
    s_waitcnt vmcnt(0)
    v_smfmac_f32_16x16x64_bf16 v[20:23], v[4:7], v[8:15], v16
    s_nop 15
    s_nop 15
    buffer_store_dwordx4 v[20:23], v1, s[12:15], 0 offen
"""
    return run(name,body,inp,1024,outdtype=np.float32)
B=np.zeros((64,16),np.float32)
for l in range(64):
    for j in range(16): B[l,j]=(l>>4)*16+j+1
res={}
for idxval in (0x44444444,0xeeeeeeee,0x0000eeee, 0xeeee0000|0x4444):
  for (la,ja) in ((0,0),(0,1),(0,2),(0,3),(0,7),(16,0),(17,5),(35,6),(63,7)):
    A=np.zeros((64,8),np.float32); A[la,ja]=1
    o=smf(bf16(A),bf16(B),np.full(64,idxval),"smf")
    if o is None: break
    o=o.reshape(64,4)
    nz=np.argwhere(o!=0)
    rows=sorted(set((int(l)>>4)*4+int(r) for l,r in nz))
    vals=sorted(set(float(o[l,r]) for l,r in nz))
    print("idx %08x A lane %d slot %d -> D rows %s vals(k+1) %s n=%d"%(idxval,la,ja,rows,vals,len(nz)))
body="""
    v_lshlrev_b32 v1, 5, v0
    v_add_u32 v1, 2, v1
    v_lshlrev_b32 v4, 8, v0
    v_add_u32 v5, 1, v4
    v_add_u32 v6, 2, v4
    v_add_u32 v7, 3, v4
    buffer_store_dwordx4 v[4:7], v1, s[12:15], 0 offen
"""
o=run("unal",body,np.zeros(16,np.uint32),4096,outdtype=np.uint16)
if o is not None: print("unaligned store:",o[:40])
body="""
    s_getreg_b32 s20, hwreg(HW_REG_HW_ID)
    s_getreg_b32 s21, hwreg(HW_REG_XCC_ID)
    v_lshrrev_b32 v1, 6, v0
    s_lshl_b32 s3, s2, 4
    v_add_u32 v1, s3, v1
    v_lshlrev_b32 v1, 3, v1
    v_mov_b32 v2, s20
    v_mov_b32 v3, s21
    buffer_store_dwordx2 v[2:3], v1, s[12:15], 0 offen
"""
o=run("hwid",body,np.zeros(16,np.uint32),256*16*8,grid=256,block=768,lds=100000,nvgpr=168)
if o is not None:
    o=o.reshape(256,16,2)
    for wg in range(0,20):
        hw=o[wg,:12,0]
        print(wg,"xcc",o[wg,0,1]&15,"simd",[(int(h)>>4)&3 for h in hw],"cu",(int(hw[0])>>8)&15,"se",(int(hw[0])>>13)&7, "sh",(int(hw[0])>>12)&1)
    ids=set((int(o[w,0,1])&15,(int(o[w,0,0])>>8)&0xff) for w in range(256))
    print("distinct CUs",len(ids))
    bad=0
    for wg in range(256):
        s=[(int(h)>>4)&3 for h in o[wg,:12,0]]
        if not all(s[i]==s[i+4]==s[i+8] for i in range(4)): bad+=1
    print("WGs with non-cyclic simd map",bad)
```

```python
import sys, os, subprocess, struct, ctypes, time
sys.path.insert(0, "cdna_kernels")
import numpy as np
from cdna_launch import AsmKernel, DeviceBuffer, _hip, hip_check
CLANG="clang"

TEMPLATE = r"""
.amdgcn_target "amdgcn-amd-amdhsa--gfx950"
.text
.globl mb_kernel
.p2align 8
.type mb_kernel,@function
mb_kernel:
    s_load_dwordx2 s[4:5], s[0:1], 0
    s_waitcnt lgkmcnt(0)
    s_mov_b32 s8, s4
    s_mov_b32 s9, s5
    s_mov_b32 s10, 0x1000000
    s_mov_b32 s11, 0x00020000
    v_lshrrev_b32 v1, 6, v0
    s_nop 1
    v_readfirstlane_b32 s20, v1
{init}
    s_mov_b32 s12, {iters}
    s_barrier
    s_memtime s[14:15]
    s_memrealtime s[22:23]
    s_waitcnt lgkmcnt(0)
.p2align 6
L_loop:
{body}
    s_sub_u32 s12, s12, 1
    s_cmp_lg_u32 s12, 0
    s_cbranch_scc1 L_loop
    s_nop 15
    s_nop 15
    s_memtime s[16:17]
    s_memrealtime s[24:25]
    s_waitcnt lgkmcnt(0)
    s_sub_u32 s16, s16, s14
    s_sub_u32 s24, s24, s22
    s_lshl_b32 s3, s2, 4
    s_add_u32 s3, s3, s20
    s_lshl_b32 s3, s3, 3
    v_mov_b32 v1, s3
    v_mov_b32 v2, s16
    v_mov_b32 v3, s24
    buffer_store_dwordx2 v[2:3], v1, s[8:11], 0 offen
    s_waitcnt vmcnt(0)
    s_endpgm
.section .rodata,"a"
.p2align 6
.amdhsa_kernel mb_kernel
  .amdhsa_next_free_vgpr {nvgpr}
  .amdhsa_next_free_sgpr 96
  .amdhsa_accum_offset {nvgpr}
  .amdhsa_group_segment_fixed_size 0
  .amdhsa_kernarg_size 8
  .amdhsa_user_sgpr_count 2
  .amdhsa_user_sgpr_kernarg_segment_ptr 1
  .amdhsa_system_sgpr_workgroup_id_x 1
.end_amdhsa_kernel
.amdgpu_metadata
---
amdhsa.version: [1, 2]
amdhsa.kernels:
  - .name: mb_kernel
    .symbol: mb_kernel.kd
    .kernarg_segment_size: 8
    .kernarg_segment_align: 8
    .group_segment_fixed_size: 0
    .private_segment_fixed_size: 0
    .wavefront_size: 64
    .sgpr_count: 96
    .vgpr_count: {nvgpr}
    .max_flat_workgroup_size: 1024
    .args:
      - {{.name: out, .size: 8, .offset: 0, .value_kind: global_buffer, .address_space: global}}
...
.end_amdgpu_metadata
"""

def run(name, body, init="", iters=500, waves=(1,2,3,4), grid=256, nvgpr=128, lds=0, unroll=8):
    body = "\n".join([body]*unroll)
    asm = TEMPLATE.format(body=body, init=init, iters=iters, nvgpr=nvgpr)
    name0=name; name=name.replace(" ","_").replace("+","_")
    open("mb_%s.s"%name,"w").write(asm)
    r = subprocess.run([CLANG,"-x","assembler","-target","amdgcn-amd-amdhsa","-mcpu=gfx950","mb_%s.s"%name,"-o","mb_%s.co"%name],capture_output=True,text=True)
    if r.returncode!=0:
        print(r.stderr); raise SystemExit(1)
    if not os.path.exists('/dev/kfd'):
        print(name,"assembled"); return
    k = AsmKernel("mb_%s.co"%name,"mb_kernel")
    buf = DeviceBuffer(0x1000000)
    res=[]
    for w in waves:
        if w*nvgpr>512: continue
        for rep in range(3):
            k.launch((grid,1,1),(256*w,1,1),struct.pack("<Q",buf.ptr),lds)
            hip_check(_hip.hipDeviceSynchronize())
        o = buf.to_numpy(np.uint32,(grid,16,2))[:,:4*w,:]
        cyc = o[:,:,0].astype(np.float64)/iters/unroll
        rt = o[:,:,1].astype(np.float64)
        clk = o[:,:,0].astype(np.float64)/rt*100
        wgmax = cyc.max(axis=1)
        res.append("w%d: per-WG max med %.1f (min %.1f max %.1f) => per-SIMD-body %.1f  wave min %.1f clk %.0fMHz"%(w,np.median(wgmax),wgmax.min(),wgmax.max(),np.median(wgmax)/w,cyc.min(),np.median(clk)))
    print(name);
    for x in res: print("   ",x)
    k.unload()
```

```python
from mb import run
import itertools
init = "\n".join("    v_mov_b32 v%d, 0x3c003c00"%i for i in range(4,160)) + "\n s_mov_b64 vcc, 0\n"
def mf(d,a,b,c):
    cs = "v[%d:%d]"%(c,c+15) if c is not None else "0"
    return "    v_mfma_f32_32x32x16_bf16 v[%d:%d], v[%d:%d], v[%d:%d], %s"%(d,d+15,a,a+3,b,b+3,cs)
S,P,O,C,Q=100,116,124,140,156
uid=[0]
def tile(t, prio_at, br, order, pvpos=10, nops="7,2"):
    L=[]
    if br:
        uid[0]+=1
        L.append("    s_cbranch_vccz LL%d"%uid[0]); L+=["    s_nop 0"]*6; L.append("LL%d:"%uid[0]); L.append("    s_waitcnt vmcnt(6)")
    for i in range(16):
        L.append("    v_exp_f32 v%d, v%d"%(S+i,S+i))
        if i==prio_at: L.append("    s_setprio 1")
        if i>=2 and i%2==0 and (order==0 or i<14): L.append("    v_cvt_pk_bf16_f32 v%d, v%d, v%d"%(P+(i-2)//2,S+i-2,S+i-1))
        if i==pvpos: L.append(mf(O,36+8*t,P,O))
    if order==0: L.append("    s_nop 0")
    else: L.append("    v_cvt_pk_bf16_f32 v%d, v%d, v%d"%(P+6,S+12,S+13))
    L.append("    v_cvt_pk_bf16_f32 v%d, v%d, v%d"%(P+7,S+14,S+15))
    L.append("    s_setprio 2")
    L.append(mf(S,4+4*((t+1)%8),Q,C))
    L.append(mf(O,40+8*t,P+4,O))
    L.append("    s_setprio 0")
    for n in nops.split(","): L.append("    s_nop %s"%n)
    return L
for prio_at,br,order in itertools.product((0,2,5,8),(0,1),(0,1)):
    body="\n".join("\n".join(tile(t,prio_at,br,order)) for t in range(8))
    run("attn_p%d_br%d_o%d"%(prio_at,br,order), body, init, waves=(2,), nvgpr=168, unroll=1, iters=200)
for pv in (9,12,14):
    body="\n".join("\n".join(tile(t,5,1,1,pvpos=pv)) for t in range(8))
    run("attn_pv%d"%pv, body, init, waves=(2,), nvgpr=168, unroll=1, iters=200)
```

```python
from xp import *
def body(R, sleep, single, pre):
    s="""
    v_lshrrev_b32 v1, 6, v0
    v_and_b32 v0, 63, v0
    s_nop 0
    v_readfirstlane_b32 s3, v1
    ; pre-touch pages (TLB warm) 
    v_lshlrev_b32 v2, 12, v0
    buffer_load_dword v9, v2, s[12:15], 0 offen offset:64
    v_add_u32 v2, 0x40000, v2
    buffer_load_dword v9, v2, s[8:11], 0 offen
    s_memrealtime s[20:21]
    s_waitcnt lgkmcnt(0)
    s_add_u32 s22, s20, 1500
    s_and_b32 s22, s22, 0xfffffc00
L_sync:
    s_memrealtime s[20:21]
    s_waitcnt lgkmcnt(0)
    s_sub_u32 s23, s20, s22
    s_cmp_lt_i32 s23, 0
    s_cbranch_scc1 L_sync
    s_cmp_ge_u32 s3, 8
    s_cbranch_scc0 L_cons
    s_cmp_ge_u32 s2, 64
    s_cbranch_scc1 L_end
    v_lshlrev_b32 v2, 4, v0
    s_lshl_b32 s24, s2, 1
    s_add_u32 s24, s24, s3
    s_sub_u32 s24, s24, 8
    s_lshl_b32 s25, s24, 10
    s_add_u32 s25, s25, 0x40000
    v_mov_b32 v4, 1
    v_mov_b32 v5, 1
    v_mov_b32 v6, 1
    v_mov_b32 v7, 1
    buffer_store_dwordx4 v[4:7], v2, s[12:15], s25 offen sc1
    v_lshlrev_b32 v3, 14, v0
    s_lshl_b32 s25, s24, 7
    s_waitcnt vmcnt(0)
    s_memrealtime s[26:27]
    s_mov_b64 exec, %d
    buffer_store_dword v4, v3, s[12:15], s25 offen sc1
    s_waitcnt lgkmcnt(0)
    s_sub_u32 s23, s26, s22
    s_branch L_out
L_cons:
"""%((1<<R)-1)
    if single:
        s+="""
    s_cmp_lg_u32 s3, 0
    s_cbranch_scc1 L_got0
    v_lshlrev_b32 v2, 7, v0
    s_mov_b64 exec, -1
"""
    else:
        s+="""
    v_and_b32 v2, 15, v0
    s_lshl_b32 s24, s3, 4
    v_add_u32 v2, s24, v2
    v_lshlrev_b32 v2, 7, v2
    s_mov_b64 exec, 0xffff
"""
    s+="""
    s_lshr_b32 s24, s2, 3
    s_and_b32 s24, s%s, %d
    s_lshl_b32 s24, s24, 14
    s_mov_b32 s30, 20000
    %s
L_poll:
    buffer_load_dword v3, v2, s[12:15], s24 offen sc1
    %s
    s_waitcnt vmcnt(0)
    %s
    v_cmp_le_u32 vcc, 1, v3
    s_nop 1
    s_cmp_eq_u64 vcc, exec
    s_cbranch_scc1 L_got
    %s
    s_sub_u32 s30, s30, 1
    s_cbranch_scc0 L_poll
L_got:
    s_mov_b64 exec, -1
L_got0:
    %s
    s_memrealtime s[26:27]
    v_lshlrev_b32 v2, 4, v0
    s_lshl_b32 s25, s3, 14
    s_add_u32 s25, s25, 0x40000
    buffer_load_dwordx4 v[8:11], v2, s[12:15], s25 offen sc1
    buffer_load_dwordx4 v[12:15], v2, s[12:15], s25 offen offset:1024 sc1
    s_waitcnt vmcnt(0)
    s_memrealtime s[28:29]
    s_waitcnt lgkmcnt(0)
    s_sub_u32 s23, s26, s22
    s_sub_u32 s28, s28, s22
    s_lshl_b32 s28, s28, 16
    s_or_b32 s23, s23, s28
L_out:
    s_mov_b64 exec, 1
    s_lshl_b32 s24, s2, 6
    s_lshl_b32 s25, s3, 2
    s_add_u32 s24, s24, s25
    s_add_u32 s24, s24, 0x30000
    v_mov_b32 v2, s24
    v_mov_b32 v3, s23
    buffer_store_dword v3, v2, s[12:15], 0 offen
L_end:
"""%("2", R-1, ("s_sleep %d"%pre) if pre else "", "v_add_u32 v8, 0x2000, v2\n    buffer_load_dword v4, v8, s[12:15], s24 offen sc1" if single else "", "v_min_u32 v3, v3, v4" if single else "", ("s_sleep %d"%sleep) if sleep else "", "s_barrier" if single else "")
    return s
for (R,sleep,single,pre) in ((1,0,0,0),(1,4,0,0),(1,4,0,30),(8,0,0,0),(8,4,0,0),(8,2,0,30),(1,0,1,0),(8,0,1,0),(8,2,1,30),(8,2,1,45)):
  for rep in range(2):
    o=run("h2", body(R,sleep,single,pre), np.zeros(0x80000,np.uint8), 0x80000, grid=256, block=640, lds=100000)
    if o is None: break
    r=o[0xc000:0xc000+256*16].reshape(256,16)
    seen=(r[:,:8]&0xffff)/100.; data=(r[:,:8]>>16)/100.; prod=r[:64,8:10]/100.
    print("R%d sleep%d single%d pre%d"%(R,sleep,single,pre),"producer drained med %.2f max %.2f | seen med %.2f max %.2f | data med %.2f max %.2f us"%(np.median(prod),prod.max(),np.median(seen),seen.max(),np.median(data),data.max()))
```

```python
from xp import *
import sys
def body(ld, st, gens, tmo):
    return """
    ; flags at b*128 ; results at 0x10000 + b*16
    s_lshl_b32 s20, s2, 7
    v_mov_b32 v1, 0
    ; poll targets: (b + 1 + 4*lane) & 255
    v_lshlrev_b32 v2, 2, v0
    v_add_u32 v2, s2, v2
    v_add_u32 v2, 1, v2
    v_and_b32 v2, 255, v2
    v_lshlrev_b32 v2, 7, v2
    s_mov_b32 s21, 1          ; generation
    s_mov_b32 s22, 0          ; timeouts
    s_mov_b32 s23, 0          ; max polls
    s_mul_i32 s26, s2, 2654435761
    s_mov_b32 s28, 0
L_gen:
    s_mul_i32 s26, s26, 1664525
    s_add_u32 s26, s26, 1013904223
    s_lshr_b32 s27, s26, 29
L_dly:
    s_sub_u32 s27, s27, 1
    s_cbranch_scc1 L_w
    s_sleep 1
    s_branch L_dly
L_w:
    v_mov_b32 v3, s21
    s_mov_b64 exec, 1
    buffer_store_dword v3, v1, s[12:15], s20 offen %s
    s_mov_b64 exec, -1
    s_mov_b32 s24, 0
L_poll:
    buffer_load_dword v4, v2, s[12:15], 0 offen %s
    s_waitcnt vmcnt(0)
    v_cmp_gt_u32 vcc, s21, v4
    s_cmp_eq_u64 vcc, 0
    s_cbranch_scc1 L_ok
    s_add_u32 s24, s24, 1
    s_cmp_lt_u32 s24, %d
    s_cbranch_scc1 L_poll
    ; timeout: count it, then resynchronise with atomics (bounded)
    s_add_u32 s22, s22, 1
    s_mov_b32 s25, 0
L_at:
    v_mov_b32 v4, 0
    buffer_atomic_or v4, v2, s[12:15], 0 offen sc0 sc1
    s_waitcnt vmcnt(0)
    v_cmp_gt_u32 vcc, s21, v4
    s_cmp_eq_u64 vcc, 0
    s_cbranch_scc1 L_at_ok
    s_add_u32 s25, s25, 1
    s_cmp_lt_u32 s25, 20000
    s_cbranch_scc1 L_at
    s_branch L_end
L_at_ok:
    s_cmp_eq_u32 s25, 0
    s_addc_u32 s28, s28, 0    ; first atomic already saw it => the polled copy was stale
L_ok:
    s_max_u32 s23, s23, s24
    s_add_u32 s21, s21, 1
    s_cmp_le_u32 s21, %d
    s_cbranch_scc1 L_gen
L_end:
    s_lshl_b32 s20, s2, 4
    s_add_u32 s20, s20, 0x10000
    v_mov_b32 v4, s22
    v_mov_b32 v5, s23
    v_mov_b32 v6, s21
    v_mov_b32 v7, s28
    s_mov_b64 exec, 1
    buffer_store_dwordx4 v[4:7], v1, s[12:15], s20 offen
"""%(st,ld,tmo,gens)
import time
for ld,st in (("sc1","sc1"),("sc0 sc1","sc1"),("sc0 sc1","sc0 sc1"),("sc1 nt","sc1")):
    t=time.time()
    o=run("stale", body(ld,st,int(sys.argv[1]),300), np.zeros(16,np.uint32), 0x20000, grid=256, block=64, lds=100000)
    if o is None: continue
    r=o[0x4000:0x4000+1024].reshape(256,4)
    print("load",ld,"store",st,"timeouts",r[:,0].sum(),"stale-proven",r[:,3].sum(),"max polls",r[:,1].max(),"gens",r[:,2].min(),"time %.1f"%(time.time()-t))
```
